```python
import torch

def _softmax(x, axis=-1):
    return torch.softmax(x, dim=axis)

def _gelu(x):
    return torch.nn.functional.gelu(x, approximate='tanh')

def _silu(x):
    return torch.nn.functional.silu(x)

def _sigmoid(x):
    return torch.sigmoid(x)

def _layernorm(x, axis=-1, eps=1e-05):
    m = x.mean(dim=axis, keepdim=True)
    v = x.var(dim=axis, keepdim=True, unbiased=False)
    return (x - m) / torch.sqrt(v + eps)

def _scatter_add(tgt, idx, src, axis=0):
    return tgt.clone().index_add_(axis, idx, src)

def _segment_sum(src, seg, n):
    out = torch.zeros((n,) + src.shape[1:], dtype=src.dtype)
    return out.index_add_(0, seg, src)

def _pad(x, pw):
    flat = tuple((v for pair in reversed(pw) for v in pair))
    return torch.nn.functional.pad(x, flat)
kernel_name = 'adaLN_cond__grouped_kv_mqa__geglu_ffn__prompt'

def setup_inputs():

    _w = lambda a: (lambda t: t.to(torch.bfloat16) if t.is_floating_point() else t)(torch.as_tensor(a))

    def _A_setup():
        B, S, D, H = (1, 2048, 1024, 32)
        Dh = D // H
        return {'x': _w((lambda *s: torch.randn(*s, dtype=torch.bfloat16) * 0.05)(B, S, D)), 'wq': _w((lambda *s: torch.randn(*s, dtype=torch.bfloat16) * 0.05)(D, H * Dh)), 'wk': _w((lambda *s: torch.randn(*s, dtype=torch.bfloat16) * 0.05)(D, Dh)), 'wv': _w((lambda *s: torch.randn(*s, dtype=torch.bfloat16) * 0.05)(D, Dh)), 'wo': _w((lambda *s: torch.randn(*s, dtype=torch.bfloat16) * 0.05)(H * Dh, D))}
    _A_in = _A_setup()

    def _B_setup():
        B, S, D, F = (1, 2048, 1024, 3584)
        return {'x': _w((lambda *s: torch.randn(*s, dtype=torch.bfloat16) * 0.05)(B, S, D)), 'w_gate': _w((lambda *s: torch.randn(*s, dtype=torch.bfloat16) * 0.05)(D, F)), 'w_up': _w((lambda *s: torch.randn(*s, dtype=torch.bfloat16) * 0.05)(D, F)), 'w_down': _w((lambda *s: torch.randn(*s, dtype=torch.bfloat16) * 0.05)(F, D))}
    _B_in = _B_setup()
    return {'A_x': _A_in['x'], 'A_wq': _A_in['wq'], 'A_wk': _A_in['wk'], 'A_wv': _A_in['wv'], 'A_wo': _A_in['wo'], 'B_x': _B_in['x'], 'B_w_gate': _B_in['w_gate'], 'B_w_up': _B_in['w_up'], 'B_w_down': _B_in['w_down'], 'c': _w((lambda *s: torch.randn(*s, dtype=torch.bfloat16) * 0.1)(1, 1024) * 8.0), 'w_mod': _w((lambda *s: torch.randn(*s, dtype=torch.bfloat16) * 0.1)(1024, 6 * 1024) * 1024 ** (-0.5) * 8.0)}

def reference(A_x, A_wq, A_wk, A_wv, A_wo, B_x, B_w_gate, B_w_up, B_w_down, c, w_mod):

    def _A_ref(x, wq, wk, wv, wo):
        B, S, D = x.shape
        H = 32
        Dh = D // H
        q = (lambda x, *d: x.permute(*d))((x @ wq).reshape(B, S, H, Dh), 0, 2, 1, 3)
        k = x @ wk
        v = x @ wv
        scores = torch.einsum('bhqd,bkd->bhqk', q, k) * Dh ** (-0.5)
        p = _softmax(scores, axis=-1)
        o = torch.einsum('bhqk,bkd->bhqd', p, v)
        return (lambda x, *d: x.permute(*d))(o, 0, 2, 1, 3).reshape(B, S, H * Dh) @ wo

    def _B_ref(x, w_gate, w_up, w_down):
        return _gelu(x @ w_gate) * (x @ w_up) @ w_down
    x = A_x
    mod = (_silu(c) @ w_mod).reshape(c.shape[0], 6, 1, -1)
    sa, ca, ga, sb, cb, gb = (mod[:, 0].clone(), mod[:, 1].clone(), mod[:, 2].clone(), mod[:, 3].clone(), mod[:, 4].clone(), mod[:, 5].clone())
    h = _layernorm(x, axis=-1) * (1 + ca) + sa
    x = x + ga * _A_ref(h, A_wq, A_wk, A_wv, A_wo)
    h = _layernorm(x, axis=-1) * (1 + cb) + sb
    x = x + gb * _B_ref(h, B_w_gate, B_w_up, B_w_down)
    return x
```

```python
import re

REG_RE = re.compile(r'^(-|\|)?(abs\()?([vsa])(\d+|\[(\d+):(\d+)\])\)?\|?$')

def parse_reg(tok):
    tok = tok.strip()
    if tok in ("vcc",): return ("s", 106, 107)
    if tok == "vcc_lo": return ("s", 106, 106)
    if tok == "vcc_hi": return ("s", 107, 107)
    if tok == "exec": return ("s", 126, 127)
    if tok == "exec_lo": return ("s", 126, 126)
    if tok == "exec_hi": return ("s", 127, 127)
    if tok == "m0": return ("s", 124, 124)
    m = REG_RE.match(tok)
    if not m: return None
    k = m.group(3)
    if m.group(5) is not None:
        return (k, int(m.group(5)), int(m.group(6)))
    n = int(m.group(4))
    return (k, n, n)

def rset(r):
    if r is None: return set()
    k, lo, hi = r
    return {(k, i) for i in range(lo, hi + 1)}

TRANS = ("v_exp_f32", "v_log_f32", "v_rcp_f32", "v_rsq_f32", "v_sqrt_f32", "v_sin_f32", "v_cos_f32", "v_rcp_iflag_f32")

class Ins:
    __slots__ = ("text", "op", "kind", "defs", "uses", "srcC", "srcAB", "passes", "sdata", "ws", "is_dpp", "lanesel")
    def __init__(self, text):
        self.text = text
        t = text.split(";")[0].strip()
        parts = t.split(None, 1)
        self.op = op = parts[0]
        rest = parts[1] if len(parts) > 1 else ""
        brk = re.findall(r"\s(?:op_sel|op_sel_hi|neg_lo|neg_hi|quad_perm):\[[^\]]*\]", rest)
        rest = re.sub(r"\s(?:op_sel|op_sel_hi|neg_lo|neg_hi|quad_perm):\[[^\]]*\]", "", rest)
        ops = [o.strip() for o in rest.split(",")] if rest else []
        mods = ""
        if ops:
            last = ops[-1].split(None, 1)
            ops[-1] = last[0] if last else ""
            mods = last[1] if len(last) > 1 else ""
        mods += " ".join(brk)
        self.defs = set(); self.uses = set(); self.srcC = set(); self.srcAB = set(); self.passes = 0
        self.sdata = set(); self.ws = 1; self.is_dpp = False; self.lanesel = set()
        R = [parse_reg(o) for o in ops]
        mo = re.search(r"offset:(\d+)", mods)
        if mo:
            lim = 4095 if op.startswith(("buffer_", "global_")) else 65535
            assert int(mo.group(1)) <= lim, "offset too large: " + text
        if op.startswith("v_mfma"):
            self.kind = "mfma"
            self.defs = rset(R[0]); self.srcAB = rset(R[1]) | rset(R[2]); self.srcC = rset(R[3])
            self.uses = self.srcAB | self.srcC
            self.passes = 8 if "32x32x16" in op else 4 if "16x16x32" in op else None
            assert self.passes, op
        elif op.startswith("v_"):
            self.kind = "trans" if op.replace("_e32", "").replace("_e64", "") in TRANS else "valu"
            self.is_dpp = ("row_" in mods or "quad_perm" in mods or "wave_" in mods or "_dpp" in op)
            if op.startswith("v_cmpx"):
                self.defs = rset(R[0]) | rset(parse_reg("exec")); self.uses = set().union(*[rset(r) for r in R[1:]])
            elif op.startswith("v_permlane") and "swap" in op:
                self.kind = "permlane"
                self.defs = rset(R[0]) | rset(R[1]); self.uses = set(self.defs)
            elif op.startswith(("v_add_co", "v_sub_co", "v_addc_co", "v_subb_co", "v_subrev_co", "v_mad_u64_u32", "v_div_scale")):
                self.defs = rset(R[0]) | rset(R[1]); self.uses = set().union(*[rset(r) for r in R[2:]])
            else:
                self.defs = rset(R[0]); self.uses = set().union(set(), *[rset(r) for r in R[1:]])
                if op.startswith(("v_fmac", "v_dot2c", "v_pk_fmac", "v_writelane", "v_mac")) or self.is_dpp or "op_sel" in mods and op.startswith("v_cvt") :
                    self.uses |= self.defs
                if op.startswith("v_cndmask") and len(ops) == 3:
                    self.uses |= rset(parse_reg("vcc"))
                if op.startswith(("v_readlane", "v_readfirstlane")):
                    self.kind = "readlane"
                if op.startswith(("v_readlane", "v_writelane")):
                    self.lanesel = rset(R[2])
        elif op.startswith(("buffer_", "global_", "flat_")):
            self.kind = "vmem"
            islds = (" lds" in " " + mods) or "_lds_" in op
            if op.startswith("buffer_wbl2") or op.startswith("buffer_inv"):
                pass
            elif "load" in op and not islds:
                self.defs = rset(R[0]); self.uses = set().union(*[rset(r) for r in R[1:]])
            elif "load" in op and islds:
                self.uses = set().union(*[rset(r) for r in R]) | rset(parse_reg("m0"))
                self.kind = "ldsdma"
            elif "store" in op or "atomic" in op:
                self.uses = set().union(*[rset(r) for r in R])
                data = R[0] if op.startswith("buffer_") else R[1]
                if data and data[2] - data[1] >= 2: self.sdata = rset(data)
                if "atomic" in op and "sc0" in mods:
                    self.defs = rset(R[0])
        elif op.startswith("ds_"):
            self.kind = "ds"
            if op.startswith(("ds_read", "ds_bpermute", "ds_permute", "ds_swizzle")) or "_rtn" in op:
                self.defs = rset(R[0]); self.uses = set().union(*[rset(r) for r in R[1:]])
            else:
                self.uses = set().union(*[rset(r) for r in R])
        elif op == "s_nop":
            self.kind = "nop"; self.ws = int(ops[0], 0) + 1
        elif op.startswith("s_"):
            self.kind = "salu"
            if op.startswith(("s_cmp", "s_bitcmp", "s_waitcnt", "s_barrier", "s_branch", "s_cbranch", "s_endpgm", "s_setprio", "s_sleep", "s_setreg")):
                self.uses = set().union(set(), *[rset(r) for r in R])
            else:
                self.defs = rset(R[0]) if R else set(); self.uses = set().union(set(), *[rset(r) for r in R[1:]])
                if "saveexec" in op: self.defs |= rset(parse_reg("exec"))
                if op.startswith(("s_load", "s_buffer_load", "s_memtime", "s_memrealtime")): self.kind = "smem"
        else:
            raise ValueError("unknown op " + text)

VALU_KINDS = ("valu", "trans", "permlane", "readlane")
M0 = ("s", 124)
EXEC = {("s", 126), ("s", 127)}

def need_ws(p, c):
    n = 0
    pv = p.kind in VALU_KINDS
    cv = c.kind in VALU_KINDS
    pdv = {r for r in p.defs if r[0] in "va"}
    pds = {r for r in p.defs if r[0] == "s"}
    if pv:
        if c.kind == "mfma" and pdv & c.uses: n = max(n, 2)
        if c.kind == "mfma" and pds & EXEC: n = max(n, 4)
        if c.kind in ("vmem", "ldsdma") and pds & c.uses: n = max(n, 5)
        if cv and pds & c.uses: n = max(n, 2)
        if c.lanesel & pds: n = max(n, 4)
        if c.kind == "readlane" and pdv & c.uses: n = max(n, 1)
        if c.kind == "readlane" and pds & EXEC: n = max(n, 4)
        if c.kind == "permlane" and pdv & c.uses: n = max(n, 2)
        if c.kind == "permlane" and pds & EXEC: n = max(n, 4)
        if c.is_dpp and pdv & c.uses: n = max(n, 2)
        if c.is_dpp and pds & EXEC: n = max(n, 5)
        if p.kind == "trans" and (cv or c.kind in ("vmem", "ds", "ldsdma")) and pdv & c.uses: n = max(n, 1)
        if c.kind == "salu" and pds & c.uses: n = max(n, 1)
    if p.op.startswith("v_dot") and (pdv & (c.uses | c.defs)):
        acc_chain = c.op == p.op and p.op.startswith("v_dot2c") and c.defs == p.defs and not (pdv & (c.uses - c.defs))
        if acc_chain:
            srcs = [parse_reg(o.strip()) for o in c.text.split(None, 1)[1].split(",")[1:]]
            if any(rset(r) & pdv for r in srcs): acc_chain = False
        if not acc_chain: n = max(n, 3)
    if p.kind == "salu" and M0 in p.defs and c.kind == "ldsdma": n = max(n, 1)
    if p.kind == "vmem" and p.sdata and (p.sdata & c.defs):
        n = max(n, 2 if cv else 1)
    if p.kind == "mfma":
        P = p.passes
        raw = {4: 8, 8: 12}[P]
        if c.kind == "mfma":
            if p.defs & c.srcAB: n = max(n, raw)
            if p.defs & c.srcC:
                if not (p.defs == c.srcC and p.passes == c.passes): n = max(n, {4: 6, 8: 10}[P])
            if (p.defs & c.defs) and not (p.defs == c.defs and c.srcC == c.defs and p.passes == c.passes): n = max(n, {4: 6, 8: 10}[P])
        else:
            if p.defs & (c.uses | c.defs): n = max(n, raw)
            if cv and (p.srcC & c.defs): n = max(n, {4: 3, 8: 7}[P])
    return n

class Prog:
    def __init__(self):
        self.items = []
    def __call__(self, text):
        for line in text.strip().split("\n"):
            line = line.strip()
            if not line or line.startswith(";"): continue
            if line.endswith(":") or line.startswith("."):
                self.items.append(line)
            else:
                self.items.append(Ins(line))
    def raw(self, s): self.items.append(s)
    def extend(self, lst):
        for l in lst: self(l)

    def resolve(self):
        WIN = 24
        items = self.items
        def build():
            br = {}
            for i, it in enumerate(items):
                if isinstance(it, Ins) and it.op.startswith(("s_branch", "s_cbranch")):
                    br.setdefault(it.text.split()[1], []).append(i)
            return br
        def tails(idx, budget, seen, branches):
            out = []
            d = 0
            j = idx - 1
            first = True
            while j >= 0 and d < budget:
                it = items[j]
                if isinstance(it, str):
                    if it.endswith(":"):
                        for b in branches.get(it[:-1], []):
                            if (b, d) in seen: continue
                            seen.add((b, d))
                            for ins, dd in tails(b + 1, budget - d, seen, branches):
                                out.append((ins, dd + d))
                        first = False
                    j -= 1; continue
                if it.op in ("s_branch", "s_endpgm") and not first:
                    break
                first = False
                out.append((it, d))
                d += it.ws
                j -= 1
            return out
        for _ in range(4):
            changed = False
            branches = build()
            i = 0
            while i < len(items):
                it = items[i]
                if isinstance(it, Ins) and it.kind != "nop":
                    need = 0
                    prev = items[i-1] if i else None
                    tl = tails(i, WIN, set(), branches)
                    if isinstance(prev, Ins) and prev.op in ("s_branch", "s_endpgm"): tl = []
                    for p, d in tl:
                        w = need_ws(p, it)
                        if w > d: need = max(need, w - d)
                    if need > 0:
                        ins = []
                        while need > 0:
                            k = min(need, 16); ins.append(Ins(f"s_nop {k-1}")); need -= k
                        items[i:i] = ins
                        i += len(ins)
                        changed = True
                        branches = build()
                i += 1
            if not changed: break
        self.items = items
    def text(self):
        return "\n".join(("    " + it.text) if isinstance(it, Ins) else it for it in self.items) + "\n"

def kernel_header(name):
    return [f".globl {name}", ".p2align 8", f".type {name},@function", f"{name}:"]

def kernel_desc(name, vgpr, sgpr=102, accum=None, extra=()):
    accum = accum if accum is not None else min(256, (vgpr + 3) // 4 * 4)
    return [".p2align 6", f".amdhsa_kernel {name}", f"  .amdhsa_next_free_vgpr {vgpr}", f"  .amdhsa_next_free_sgpr {sgpr}",
            f"  .amdhsa_accum_offset {accum}", "  .amdhsa_group_segment_fixed_size 0", "  .amdhsa_kernarg_size 112",
            "  .amdhsa_user_sgpr_count 2", "  .amdhsa_user_sgpr_kernarg_segment_ptr 1", "  .amdhsa_system_sgpr_workgroup_id_x 1",
            *extra, ".end_amdhsa_kernel"]

def vr(lo, n, k="v"):
    return f"{k}[{lo}:{lo+n-1}]" if n > 1 else f"{k}{lo}"
```

```python
from asmlib import *

class G:
    def __init__(self, **kw): self.__dict__.update(kw)

WS_BYTES = 268435456

def gemm_core(P, c):
    NW, TN, TM, wn, wm, KS, S, NKS = c.NW, c.TN, c.TM, c.wn, c.wm, c.KS, c.S, c.NKS
    NS = NKS // KS
    STAGE = (TN + TM) * KS * 1024
    c.STAGE = STAGE
    ak, ab = c.acc; fk, fb = c.frag
    vA0, vB0, vA, vB, vG = c.vt, c.vt + 1, c.vt + 2, c.vt + 3, c.vt + 4
    KG = getattr(c, "KG", 1)
    NG = KS // KG
    nfr = wn + wm
    def acc(tn, tm): return vr(ab + (tn * wm + tm) * 16, 16, ak)
    def fA(buf, tn, kk): return vr(fb + ((buf * KG + kk) * nfr + tn) * 4, 4, fk)
    def fB(buf, tm, kk): return vr(fb + ((buf * KG + kk) * nfr + wn + tm) * 4, 4, fk)
    c.accf = acc
    UL = getattr(c, "UL", min(KS, 4))
    upt = KS // UL
    units = (TN + TM) * upt
    upw = (units + NW - 1) // NW
    umin = units // NW
    Lmin = umin * UL
    sUG = 46
    sUL = 46 + upw
    sRD, sWR, sCNT, sT0, sT1, sHAS, sT2 = 40, 41, 42, 43, 44, 45, 39
    assert sUL + upw <= 100
    P(f"v_and_b32 v{vG}, 63, v0")
    P(f"v_lshlrev_b32 v{vG}, 4, v{vG}")
    for j in range(upw):
        P(f"s_add_u32 s{sT0}, s22, {j*NW}")
        P(f"s_mul_i32 s{sUL+j}, s{sT0}, {UL*1024}")
        if c.lds_base: P(f"s_add_u32 s{sUL+j}, s{sUL+j}, {c.lds_base}")
        if upt > 1:
            P(f"s_and_b32 s{sT2}, s{sT0}, {upt-1}")
            P(f"s_mul_i32 s{sT2}, s{sT2}, {UL*1024}")
            P(f"s_lshr_b32 s{sT0}, s{sT0}, {upt.bit_length()-1}")
        P(f"s_add_u32 s{sT1}, s{sT0}, s20")
        P(f"s_mul_i32 s{sT1}, s{sT1}, {c.A_pitch}")
        P(f"s_add_u32 s{sT1}, s{sT1}, {c.A_base}")
        P(f"s_add_u32 s{sUG+j}, s{sT0}, s21")
        P(f"s_sub_u32 s{sUG+j}, s{sUG+j}, {TN}")
        P(f"s_mul_i32 s{sUG+j}, s{sUG+j}, {c.B_pitch}")
        P(f"s_add_u32 s{sUG+j}, s{sUG+j}, {c.B_base}")
        P(f"s_cmp_lt_u32 s{sT0}, {TN}")
        P(f"s_cselect_b32 s{sUG+j}, s{sT1}, s{sUG+j}")
        if upt > 1: P(f"s_add_u32 s{sUG+j}, s{sUG+j}, s{sT2}")
    partial = units % NW != 0
    if partial:
        P(f"s_cmp_lt_u32 s22, {units % NW}")
        P(f"s_cselect_b64 vcc, -1, 0")
    GN, GM = c.GN, c.GM
    P(f"s_and_b32 s{sT0}, s22, {GN-1}")
    P(f"s_mul_i32 s{sT0}, s{sT0}, {wn*KS*1024}")
    if c.lds_base: P(f"s_add_u32 s{sT0}, s{sT0}, {c.lds_base}")
    P(f"v_add_u32 v{vA0}, s{sT0}, v{vG}")
    P(f"s_lshr_b32 s{sT0}, s22, {GN.bit_length()-1}")
    P(f"s_mul_i32 s{sT0}, s{sT0}, {wm*KS*1024}")
    P(f"s_add_u32 s{sT0}, s{sT0}, {TN*KS*1024 + c.lds_base}")
    P(f"v_add_u32 v{vB0}, s{sT0}, v{vG}")
    lbl = [0]
    def dma_group(slot_sreg=None, slot_imm=None):
        groups = []
        for j in range(upw):
            for k in range(UL):
                g = []
                if k == 0:
                    if slot_sreg is not None: g.append(f"s_add_u32 m0, s{slot_sreg}, s{sUL+j}")
                    else: g.append(f"s_add_u32 m0, s{sUL+j}, {slot_imm}")
                ld = f"buffer_load_dwordx4 v{vG}, s[4:7], s{sUG+j} offen offset:{k*1024} lds"
                if partial and j == upw - 1:
                    lbl[0] += 1
                    L = f"L_{c.name}_skip{lbl[0]}"
                    g += [f"s_cbranch_vccz {L}", ld, f"{L}:"]
                else:
                    g.append(ld)
                groups.append(g)
        groups[-1].append(f"v_add_u32 v{vG}, {KS*1024}, v{vG}")
        return groups
    ng = upw * UL
    nm = wn * wm
    n1 = getattr(c, "n1", (ng + NG - 1) // NG)
    n1 = min(n1, ng)
    for s in range(S - 1):
        for g in dma_group(slot_imm=s * STAGE): P.extend(g)
    P(f"s_mov_b32 s{sWR}, {(S-1)*STAGE}")
    for g in dma_group(slot_sreg=sWR)[:n1]: P.extend(g)
    if getattr(c, "pre_hook", None): c.pre_hook(P)
    for r in range(wn * wm * 16):
        P(f"v_mov_b32 v{ab+r}, 0" if ak == "v" else f"v_accvgpr_write_b32 a{ab+r}, 0")
    P(f"s_mov_b32 s{sRD}, 0")
    P(f"v_mov_b32 v{vA}, v{vA0}")
    P(f"v_mov_b32 v{vB}, v{vB0}")
    extra = getattr(c, "pre_vm", 0)
    P(f"s_waitcnt vmcnt({min(63,(S-2)*Lmin + min(n1, Lmin) + extra)})")
    P("s_barrier")
    def reads(buf, g):
        out = []
        for kk in range(KG):
            ks = g * KG + kk
            r = [f"ds_read_b128 {fB(buf, tm, kk)}, v{vB} offset:{(tm*KS+ks)*1024}" for tm in range(wm)]
            r2 = [f"ds_read_b128 {fA(buf, tn, kk)}, v{vA} offset:{(tn*KS+ks)*1024}" for tn in range(wn)]
            out += [r2[0]] + r + r2[1:]
        return out
    P.extend(reads(0, 0))
    def mfmas(buf):
        return [f"v_mfma_f32_32x32x16_bf16 {acc(tn,tm)}, {fA(buf,tn,kk)}, {fB(buf,tm,kk)}, {acc(tn,tm)}" for kk in range(KG) for tn in range(wn) for tm in range(wm)]
    def weave(mf, rd, dm):
        n = len(mf)
        slots = [[] for _ in range(n)]
        for k, g in enumerate(rd):
            slots[min(n - 1, (k * n) // max(len(rd), n) if len(rd) > n else k)] += [g]
        for k, g in enumerate(dm):
            slots[min(n - 1, (k * n) // len(dm) + (n // len(dm)) // 2)] += g
        out = []
        for i in range(n):
            out.append(mf[i]); out += slots[i]
        if getattr(c, "no_dma", 0): out = [o for o in out if not o.startswith("buffer_load")]
        if getattr(c, "no_rd", 0): out = [o for o in out if not o.startswith("ds_read")]
        if getattr(c, "no_mfma", 0): out = [o for o in out if not o.startswith("v_mfma")]
        return out
    bufstate = [0]
    def stage_body(dma_rest, dma_first, vm_allowed, last):
        rest = dma_group(slot_sreg=sWR)[n1:] if dma_rest else []
        for ks in range(NG):
            buf = bufstate[0]
            if ks < NG - 1:
                P("s_waitcnt lgkmcnt(0)")
                lo = ks * len(rest) // (NG - 1); hi = (ks + 1) * len(rest) // (NG - 1)
                P.extend(weave(mfmas(buf), reads(buf ^ 1, ks + 1), rest[lo:hi]))
            else:
                if last:
                    P("s_waitcnt lgkmcnt(0)")
                    P.extend(mfmas(buf))
                else:
                    P(f"s_mov_b32 s{sWR}, s{sRD}")
                    P(f"s_add_u32 s{sRD}, s{sRD}, {STAGE}")
                    P(f"s_cmp_eq_u32 s{sRD}, {S*STAGE}")
                    P(f"s_cselect_b32 s{sRD}, 0, s{sRD}")
                    P(f"s_waitcnt vmcnt({min(63, vm_allowed)}) lgkmcnt(0)")
                    P(f"v_add_u32 v{vA}, s{sRD}, v{vA0}")
                    P(f"v_add_u32 v{vB}, s{sRD}, v{vB0}")
                    if not getattr(c, "no_bar", 0): P("s_barrier")
                    d = dma_group(slot_sreg=sWR)[:n1] if dma_first else []
                    P.extend(weave(mfmas(buf), reads(buf ^ 1, 0), d))
            bufstate[0] ^= 1
    nmain = NS - S
    unroll = 1 if NG % 2 == 0 else 2
    if nmain % unroll:
        stage_body(True, True, (S - 2) * Lmin, False); nmain -= 1
    if nmain > 0:
        P(f"s_mov_b32 s{sCNT}, {nmain // unroll}")
        P(f".p2align 6")
        P(f"L_{c.name}_loop:")
        for _ in range(unroll): stage_body(True, True, (S - 2) * Lmin, False)
        P(f"s_sub_u32 s{sCNT}, s{sCNT}, 1")
        P(f"s_cmp_lg_u32 s{sCNT}, 0")
        P(f"s_cbranch_scc1 L_{c.name}_loop")
    for t in range(S):
        stage_body(t == 0, False, max(0, S - 2 - t) * Lmin, t == S - 1)
```

```python
import sys
from asmlib import *
from layout import *
from gemm import G, gemm_core

KA = dict(x=0, wq=8, wk=16, wv=24, wo=32, bx=40, wg=48, wu=56, wd=64, c=72, wmod=80, out=88, dbg=96, ws=104)
SZ = dict(x=2048*1024*2, wq=1024*1024*2, wk=65536, wv=65536, wo=1024*1024*2, wg=1024*3584*2, wu=1024*3584*2, wd=3584*1024*2,
          c=2048, wmod=1024*6144*2, out=2048*1024*2, ws=WS_BYTES)
LOG2E = 0x3fb8aa3b

def begin(P, name, nblocks, srds):
    P.extend(kernel_header(name))
    P(f"s_cmp_ge_u32 s2, {nblocks}")
    P(f"s_cbranch_scc1 L_{name}_end")
    for b, s in srds:
        P(f"s_load_dwordx2 s[{s}:{s+1}], s[0:1], {KA[b]}")
    P("v_lshrrev_b32 v1, 6, v0")
    P("v_readfirstlane_b32 s22, v1")
    P("s_waitcnt lgkmcnt(0)")
    for b, s in srds:
        P(f"s_and_b32 s{s+1}, s{s+1}, 0xffff")
        P(f"s_mov_b32 s{s+2}, {SZ[b]}")
        P(f"s_mov_b32 s{s+3}, 0x00020000")

def end(P, name):
    P(f"L_{name}_end:")
    P("s_endpgm")

def prep_lane_consts(P, vl, vsrc_row, vsrc_chunk, vtr, vt, plain=True):
    P(f"v_lshrrev_b32 v{vsrc_row}, 4, v{vl}")
    P(f"v_lshlrev_b32 v{vt}, 2, v{vsrc_row}")
    P(f"v_and_b32 v{vsrc_chunk}, 15, v{vl}")
    P(f"v_xor_b32 v{vsrc_chunk}, v{vt}, v{vsrc_chunk}")
    P(f"v_lshlrev_b32 v{vsrc_chunk}, 4, v{vsrc_chunk}")
    P(f"v_bfe_u32 v{vtr}, v{vl}, 1, 1")
    P(f"v_lshlrev_b32 v{vtr}, 3, v{vtr}")
    P(f"v_and_b32 v{vt}, 1, v{vl}")
    P(f"v_lshl_or_b32 v{vtr}, v{vt}, 4, v{vtr}")
    P(f"v_bfe_u32 v{vt}, v{vl}, 4, 1")
    P(f"v_lshl_or_b32 v{vtr}, v{vt}, {5 if plain else 12}, v{vtr}")
    P(f"v_bfe_u32 v{vt}, v{vl}, 2, 2")
    P(f"v_lshl_or_b32 v{vtr}, v{vt}, 6, v{vtr}")
    P(f"v_lshl_or_b32 v{vtr}, v{vt}, 8, v{vtr}")
    P(f"v_bfe_u32 v{vt}, v{vl}, 5, 1")
    P(f"v_lshl_or_b32 v{vtr}, v{vt}, 11, v{vtr}")

def prep_dma(P, srd, vsrc, s_src, pitch, s_lds, st):
    for q in range(4):
        P(f"s_add_u32 m0, s{s_lds}, {q*1024}")
        P(f"s_add_u32 s{st}, s{s_src}, {q*4*pitch}")
        P(f"buffer_load_dwordx4 v{vsrc}, s[{srd}:{srd+3}], s{st} offen lds")

def prep_plain_out(P, vtr_abs, vtmp, vdata, vl16, s_dst, ntpitch, st, nnt=4):
    for nt in range(nnt):
        P(f"v_xor_b32 v{vtmp+nt}, {nt<<6}, v{vtr_abs}")
    for nt in range(nnt):
        P(f"ds_read_b64_tr_b16 v[{vdata+4*nt}:{vdata+4*nt+1}], v{vtmp+nt}")
        P(f"ds_read_b64_tr_b16 v[{vdata+4*nt+2}:{vdata+4*nt+3}], v{vtmp+nt} offset:1024")
    for nt in range(nnt):
        P(f"s_add_u32 s{st}, s{s_dst}, {nt*ntpitch}")
        P(f"s_waitcnt lgkmcnt({2*(nnt-1-nt)})")
        P(f"buffer_store_dwordx4 v[{vdata+4*nt}:{vdata+4*nt+3}], v{vl16}, s[4:7], s{st} offen")

def round_bf16(P, v, tmp=None):
    P(f"v_cvt_pk_bf16_f32 v{v}, v{v}, v{v}")
    P(f"v_lshlrev_b32 v{v}, 16, v{v}")

def k1():
    name = "k1_kernel"
    P = Prog()
    NB = 384 + 128 + 8
    begin(P, name, NB, [("ws", 4), ("wmod", 8), ("c", 12), ("wq", 16), ("wk", 24), ("wv", 28)])
    P("s_cmp_ge_u32 s2, 384")
    P(f"s_cbranch_scc1 L_k1_prep")
    P("s_and_b32 s32, s2, 3")
    P("s_lshr_b32 s33, s2, 2")
    P("v_lshrrev_b32 v2, 3, v0")
    P("v_and_b32 v3, 7, v0")
    P("s_lshl_b32 s34, s32, 8")
    P("v_add_u32 v4, s34, v2")
    P("v_lshlrev_b32 v5, 1, v4")
    P("s_mov_b32 s35, 12288")
    P("v_mul_lo_u32 v4, v4, s35")
    P("v_lshl_add_u32 v4, v3, 4, v4")
    P("s_lshl_b32 s36, s33, 7")
    P("v_add_u32 v4, s36, v4")
    for it in range(8):
        P(f"buffer_load_ushort v{8+it}, v5, s[12:15], 0 offen offset:{it*64}")
    for it in range(8):
        P(f"s_mov_b32 s37, {it*32*12288}")
        P(f"buffer_load_dwordx4 v[{16+4*it}:{19+4*it}], v4, s[8:11], s37 offen")
    for j in range(8): P(f"v_mov_b32 v{48+j}, 0")
    P("s_waitcnt vmcnt(8)")
    for it in range(8):
        P(f"v_lshlrev_b32 v{8+it}, 16, v{8+it}")
        P(f"v_mul_f32 v56, {LOG2E:#x}, v{8+it}")
        P(f"v_exp_f32 v56, -v56")
        P(f"v_add_f32 v56, 1.0, v56")
        P(f"v_rcp_f32 v56, v56")
        P(f"v_mul_f32 v{8+it}, v{8+it}, v56")
        round_bf16(P, 8 + it)
    for it in range(8):
        P(f"s_waitcnt vmcnt({7-it})")
        for d in range(4):
            P(f"v_lshlrev_b32 v56, 16, v{16+4*it+d}")
            P(f"v_and_b32 v57, 0xffff0000, v{16+4*it+d}")
            P(f"v_fmac_f32 v{48+2*d}, v56, v{8+it}")
            P(f"v_fmac_f32 v{49+2*d}, v57, v{8+it}")
    P("v_lshlrev_b32 v6, 5, v0")
    P("ds_write_b128 v6, v[48:51]")
    P("ds_write_b128 v6, v[52:55] offset:16")
    P("s_waitcnt lgkmcnt(0)")
    P("s_barrier")
    P("s_cmp_lg_u32 s22, 0")
    P(f"s_cbranch_scc1 L_{name}_end")
    P("v_lshlrev_b32 v6, 2, v0")
    for j in range(32):
        P(f"ds_read_b32 v{8+j}, v6 offset:{j*256}")
        if j == 14 or j == 29: P("s_waitcnt lgkmcnt(0)")
    P("s_waitcnt lgkmcnt(0)")
    for st in (16, 8, 4, 2, 1):
        for j in range(st): P(f"v_add_f32 v{8+j}, v{8+j}, v{8+j+st}")
    P("s_mul_i32 s34, s32, 24576")
    P("s_lshl_b32 s36, s33, 8")
    P("s_add_u32 s34, s34, s36")
    P(f"s_add_u32 s34, s34, {OFF_MODP}")
    P("buffer_store_dword v8, v6, s[4:7], s34 offen")
    P(f"s_branch L_{name}_end")
    P("L_k1_prep:")
    P("v_and_b32 v2, 63, v0")
    prep_lane_consts(P, 2, 3, 4, 5, 6)
    P("v_lshlrev_b32 v7, 4, v2")
    P("s_lshl_b32 s40, s22, 13")
    P("s_cmp_ge_u32 s2, 512")
    P("s_cbranch_scc1 L_k1_kv")
    P("s_sub_u32 s32, s2, 384")
    P("s_lshr_b32 s33, s32, 3")
    P("s_and_b32 s32, s32, 7")
    P("s_lshl_b32 s33, s33, 2")
    P("s_add_u32 s33, s33, s22")
    P("v_lshl_add_u32 v8, v3, 11, v4")
    P("s_lshl_b32 s34, s33, 15")
    P("s_lshl_b32 s35, s32, 8")
    P("s_add_u32 s34, s34, s35")
    prep_dma(P, 16, 8, 34, 2048, 40, 36)
    P("v_add_u32 v5, s40, v5")
    P("s_lshl_b32 s35, s32, 18")
    P("s_lshl_b32 s37, s33, 10")
    P("s_add_u32 s35, s35, s37")
    P(f"s_add_u32 s35, s35, {OFF_FWQ}")
    P("s_waitcnt vmcnt(0)")
    prep_plain_out(P, 5, 8, 16, 7, 35, 65536, 36)
    P(f"s_branch L_{name}_end")
    P("L_k1_kv:")
    P("s_sub_u32 s32, s2, 512")
    P("s_lshl_b32 s32, s32, 2")
    P("s_add_u32 s32, s32, s22")
    P("s_lshl_b32 s33, s32, 11")
    for mat, srd in ((0, 24), (1, 28)):
        for q in range(2):
            P(f"s_add_u32 m0, s40, {mat*2048 + q*1024}")
            P(f"buffer_load_dwordx4 v7, s[{srd}:{srd+3}], s33 offen offset:{q*1024} lds".replace(f"offset:{q*1024} ", "") if False else
              f"s_add_u32 s36, s33, {q*1024}")
            P(f"buffer_load_dwordx4 v7, s[{srd}:{srd+3}], s36 offen lds")
    P("v_lshrrev_b32 v8, 4, v2")
    P("v_lshlrev_b32 v8, 3, v8")
    P("v_bfe_u32 v9, v2, 2, 2")
    P("v_add_u32 v8, v8, v9")
    P("v_lshlrev_b32 v8, 6, v8")
    P("v_add_u32 v8, s40, v8")
    P("v_and_b32 v9, 3, v2")
    P("v_lshl_add_u32 v10, v9, 4, v8")
    P("v_and_b32 v11, 1, v2")
    P("v_lshl_add_u32 v11, v11, 4, v8")
    P("v_bfe_u32 v9, v2, 1, 1")
    P("v_lshl_add_u32 v11, v9, 3, v11")
    P("s_waitcnt vmcnt(0)")
    for T in range(2):
        for hf in range(2):
            P(f"ds_read_b64_tr_b16 v[{16+4*T+2*hf}:{17+4*T+2*hf}], v10 offset:{T*8 + hf*256}")
    for T in range(2):
        for hf in range(2):
            P(f"ds_read_b64_tr_b16 v[{24+4*T+2*hf}:{25+4*T+2*hf}], v11 offset:{2048 + T*32 + hf*256}")
    P("s_lshl_b32 s35, s32, 10")
    P("s_waitcnt lgkmcnt(0)")
    for j in range(4):
        P(f"s_add_u32 s36, s35, {OFF_FWKV + j*32768}")
        P(f"buffer_store_dwordx4 v[{16+4*j}:{19+4*j}], v7, s[4:7], s36 offen")
    end(P, name)
    P.resolve()
    return dict(name=name, text=P.text(), vgpr=64, sgpr=48, grid=NB, block=256, lds=32768)

KERNELS = []
def main(path):
    ks = [f() for f in KERNELS]
    hdr = open("adaLN_cond__grouped_kv_mqa__geglu_ffn__prompt.s.ref").read().split("\n")
    lines = [l for l in hdr if l.startswith(";") and "@launch" not in l and "Override" not in l and "grid=ceil" not in l]
    lines = lines[:15]
    for k in ks:
        lines.append(f"; @launch kernel={k['name']} grid=({k['grid']},1,1) block=({k['block']},1,1) lds={k['lds']}")
    lines += ['.amdgcn_target "amdgcn-amd-amdhsa--gfx950"', ".text"]
    for k in ks: lines.append(k["text"])
    lines.append('.section .rodata,"a"')
    for k in ks: lines += kernel_desc(k["name"], k["vgpr"], k["sgpr"], k.get("accum"))
    open(path, "w").write("\n".join(lines) + "\n")
```

```python
OFF_MODP = 0x0000000
OFF_MODF = 0x0020000
OFF_KN   = 0x0028000
OFF_ST   = 0x0030000
OFF_CSB  = 0x0070000
OFF_CSF  = 0x00E8000
OFF_FWKV = 0x0100000
OFF_FKV  = 0x0140000
OFF_FWQ  = 0x0200000
OFF_FWO  = 0x0400000
OFF_FH   = 0x0800000
OFF_FO   = 0x0C00000
OFF_FX1  = 0x1000000
OFF_FWD  = 0x1400000
OFF_FWGU = 0x2000000
OFF_FA   = 0x3000000
WS_BYTES = 268435456
```

```python
import sys, gen
import importlib
for m in ("gen_k2", "gen_k3", "gen_k456"):
    try: importlib.import_module(m)
    except ModuleNotFoundError: pass
order = [getattr(gen, n) for n in ("k1", "k2", "kp", "k3", "k4", "k5", "k6") if hasattr(gen, n)]
gen.KERNELS[:] = order
gen.main(sys.argv[1] if len(sys.argv) > 1 else "adaLN_cond__grouped_kv_mqa__geglu_ffn__prompt.s")
```

```python
import re

REG_RE = re.compile(r'^(-|\|)?(abs\()?([vsa])(\d+|\[(\d+):(\d+)\])\)?\|?$')

def parse_reg(tok):
    tok = tok.strip()
    if tok in ("vcc",): return ("s", 106, 107)
    if tok == "vcc_lo": return ("s", 106, 106)
    if tok == "vcc_hi": return ("s", 107, 107)
    if tok == "exec": return ("s", 126, 127)
    if tok == "exec_lo": return ("s", 126, 126)
    if tok == "exec_hi": return ("s", 127, 127)
    if tok == "m0": return ("s", 124, 124)
    m = REG_RE.match(tok)
    if not m: return None
    k = m.group(3)
    if m.group(5) is not None:
        return (k, int(m.group(5)), int(m.group(6)))
    n = int(m.group(4))
    return (k, n, n)

def rset(r):
    if r is None: return set()
    k, lo, hi = r
    return {(k, i) for i in range(lo, hi + 1)}

TRANS = ("v_exp_f32", "v_log_f32", "v_rcp_f32", "v_rsq_f32", "v_sqrt_f32", "v_sin_f32", "v_cos_f32", "v_rcp_iflag_f32")

class Ins:
    __slots__ = ("text", "op", "kind", "defs", "uses", "srcC", "srcAB", "passes", "sdata", "ws", "is_dpp", "lanesel")
    def __init__(self, text):
        self.text = text
        t = text.split(";")[0].strip()
        parts = t.split(None, 1)
        self.op = op = parts[0]
        rest = parts[1] if len(parts) > 1 else ""
        brk = re.findall(r"\s(?:op_sel|op_sel_hi|neg_lo|neg_hi|quad_perm):\[[^\]]*\]", rest)
        rest = re.sub(r"\s(?:op_sel|op_sel_hi|neg_lo|neg_hi|quad_perm):\[[^\]]*\]", "", rest)
        ops = [o.strip() for o in rest.split(",")] if rest else []
        mods = ""
        if ops:
            last = ops[-1].split(None, 1)
            ops[-1] = last[0] if last else ""
            mods = last[1] if len(last) > 1 else ""
        mods += " ".join(brk)
        self.defs = set(); self.uses = set(); self.srcC = set(); self.srcAB = set(); self.passes = 0
        self.sdata = set(); self.ws = 1; self.is_dpp = False; self.lanesel = set()
        R = [parse_reg(o) for o in ops]
        mo = re.search(r"offset:(\d+)", mods)
        if mo:
            lim = 4095 if op.startswith(("buffer_", "global_")) else 65535
            assert int(mo.group(1)) <= lim, "offset too large: " + text
        if op.startswith("v_mfma"):
            self.kind = "mfma"
            self.defs = rset(R[0]); self.srcAB = rset(R[1]) | rset(R[2]); self.srcC = rset(R[3])
            self.uses = self.srcAB | self.srcC
            self.passes = 8 if "32x32x16" in op else 4 if "16x16x32" in op else 2 if "4x4x4" in op else None
            assert self.passes, op
        elif op.startswith("v_"):
            self.kind = "trans" if op.replace("_e32", "").replace("_e64", "") in TRANS else "valu"
            self.is_dpp = ("row_" in mods or "quad_perm" in mods or "wave_" in mods or "_dpp" in op)
            if op.startswith("v_cmpx"):
                self.defs = rset(R[0]) | rset(parse_reg("exec")); self.uses = set().union(*[rset(r) for r in R[1:]])
            elif op.startswith("v_permlane") and "swap" in op:
                self.kind = "permlane"
                self.defs = rset(R[0]) | rset(R[1]); self.uses = set(self.defs)
            elif op.startswith(("v_add_co", "v_sub_co", "v_addc_co", "v_subb_co", "v_subrev_co", "v_mad_u64_u32", "v_div_scale")):
                self.defs = rset(R[0]) | rset(R[1]); self.uses = set().union(*[rset(r) for r in R[2:]])
            else:
                self.defs = rset(R[0]); self.uses = set().union(set(), *[rset(r) for r in R[1:]])
                if op.startswith(("v_fmac", "v_dot2c", "v_pk_fmac", "v_writelane", "v_mac")) or self.is_dpp or "op_sel" in mods and op.startswith("v_cvt") :
                    self.uses |= self.defs
                if op.startswith("v_cndmask") and len(ops) == 3:
                    self.uses |= rset(parse_reg("vcc"))
                if op.startswith(("v_readlane", "v_readfirstlane")):
                    self.kind = "readlane"
                if op.startswith(("v_readlane", "v_writelane")):
                    self.lanesel = rset(R[2])
        elif op.startswith(("buffer_", "global_", "flat_")):
            self.kind = "vmem"
            islds = (" lds" in " " + mods) or "_lds_" in op
            if op.startswith("buffer_wbl2") or op.startswith("buffer_inv"):
                pass
            elif "load" in op and not islds:
                self.defs = rset(R[0]); self.uses = set().union(*[rset(r) for r in R[1:]])
            elif "load" in op and islds:
                self.uses = set().union(*[rset(r) for r in R]) | rset(parse_reg("m0"))
                self.kind = "ldsdma"
            elif "store" in op or "atomic" in op:
                self.uses = set().union(*[rset(r) for r in R])
                data = R[0] if op.startswith("buffer_") else R[1]
                if data and data[2] - data[1] >= 2: self.sdata = rset(data)
                if "atomic" in op and "sc0" in mods:
                    self.defs = rset(R[0])
        elif op.startswith("ds_"):
            self.kind = "ds"
            if op.startswith(("ds_read", "ds_bpermute", "ds_permute", "ds_swizzle")) or "_rtn" in op:
                self.defs = rset(R[0]); self.uses = set().union(*[rset(r) for r in R[1:]])
            else:
                self.uses = set().union(*[rset(r) for r in R])
        elif op == "s_nop":
            self.kind = "nop"; self.ws = int(ops[0], 0) + 1
        elif op.startswith("s_"):
            self.kind = "salu"
            if op.startswith(("s_cmp", "s_bitcmp", "s_waitcnt", "s_barrier", "s_branch", "s_cbranch", "s_endpgm", "s_setprio", "s_sleep", "s_setreg")):
                self.uses = set().union(set(), *[rset(r) for r in R])
            else:
                self.defs = rset(R[0]) if R else set(); self.uses = set().union(set(), *[rset(r) for r in R[1:]])
                if "saveexec" in op: self.defs |= rset(parse_reg("exec"))
                if op.startswith(("s_load", "s_buffer_load", "s_memtime", "s_memrealtime")): self.kind = "smem"
        else:
            raise ValueError("unknown op " + text)

VALU_KINDS = ("valu", "trans", "permlane", "readlane")
M0 = ("s", 124)
EXEC = {("s", 126), ("s", 127)}

def need_ws(p, c):
    n = 0
    pv = p.kind in VALU_KINDS
    cv = c.kind in VALU_KINDS
    pdv = {r for r in p.defs if r[0] in "va"}
    pds = {r for r in p.defs if r[0] == "s"}
    if pv:
        if c.kind == "mfma" and pdv & c.uses: n = max(n, 2)
        if c.kind == "mfma" and pds & EXEC: n = max(n, 4)
        if c.kind in ("vmem", "ldsdma") and pds & c.uses: n = max(n, 5)
        if cv and pds & c.uses: n = max(n, 2)
        if c.lanesel & pds: n = max(n, 4)
        if c.kind == "readlane" and pdv & c.uses: n = max(n, 1)
        if c.kind == "readlane" and pds & EXEC: n = max(n, 4)
        if c.kind == "permlane" and pdv & c.uses: n = max(n, 2)
        if c.kind == "permlane" and pds & EXEC: n = max(n, 4)
        if c.is_dpp and pdv & c.uses: n = max(n, 2)
        if c.is_dpp and pds & EXEC: n = max(n, 5)
        if p.kind == "trans" and (cv or c.kind in ("vmem", "ds", "ldsdma")) and pdv & c.uses: n = max(n, 1)
        if c.kind == "salu" and pds & c.uses: n = max(n, 1)
    if p.op.startswith("v_dot") and (pdv & (c.uses | c.defs)):
        acc_chain = c.op == p.op and p.op.startswith("v_dot2c") and c.defs == p.defs and not (pdv & (c.uses - c.defs))
        if acc_chain:
            srcs = [parse_reg(o.strip()) for o in c.text.split(None, 1)[1].split(",")[1:]]
            if any(rset(r) & pdv for r in srcs): acc_chain = False
        if not acc_chain: n = max(n, 3)
    if p.kind == "salu" and M0 in p.defs and c.kind == "ldsdma": n = max(n, 1)
    if p.kind == "vmem" and p.sdata and (p.sdata & c.defs):
        n = max(n, 2 if cv else 1)
    if p.kind == "mfma":
        P = p.passes
        raw = {2: 5, 4: 8, 8: 12}[P]
        if c.kind == "mfma":
            if p.defs & c.srcAB: n = max(n, raw)
            if p.defs & c.srcC:
                if not (p.defs == c.srcC and p.passes == c.passes): n = max(n, {2: 4, 4: 6, 8: 10}[P])
                elif P == 2: n = max(n, 2)
            if (p.defs & c.defs) and not (p.defs == c.defs and c.srcC == c.defs and p.passes == c.passes): n = max(n, {2: 4, 4: 6, 8: 10}[P])
        else:
            if p.defs & (c.uses | c.defs): n = max(n, raw)
            if cv and (p.srcC & c.defs): n = max(n, {2: 1, 4: 3, 8: 7}[P])
    return n

class Prog:
    def __init__(self):
        self.items = []
    def __call__(self, text):
        for line in text.strip().split("\n"):
            line = line.strip()
            if not line or line.startswith(";"): continue
            if line.endswith(":") or line.startswith("."):
                self.items.append(line)
            else:
                self.items.append(Ins(line))
    def raw(self, s): self.items.append(s)
    def extend(self, lst):
        for l in lst: self(l)

    def resolve(self):
        WIN = 24
        items = self.items
        def build():
            br = {}
            for i, it in enumerate(items):
                if isinstance(it, Ins) and it.op.startswith(("s_branch", "s_cbranch")):
                    br.setdefault(it.text.split()[1], []).append(i)
            return br
        def tails(idx, budget, seen, branches):
            out = []
            d = 0
            j = idx - 1
            first = True
            while j >= 0 and d < budget:
                it = items[j]
                if isinstance(it, str):
                    if it.endswith(":"):
                        for b in branches.get(it[:-1], []):
                            if (b, d) in seen: continue
                            seen.add((b, d))
                            for ins, dd in tails(b + 1, budget - d, seen, branches):
                                out.append((ins, dd + d))
                        first = False
                    j -= 1; continue
                if it.op in ("s_branch", "s_endpgm") and not first:
                    break
                first = False
                out.append((it, d))
                d += it.ws
                j -= 1
            return out
        for _ in range(4):
            changed = False
            branches = build()
            i = 0
            while i < len(items):
                it = items[i]
                if isinstance(it, Ins) and it.kind != "nop":
                    need = 0
                    prev = items[i-1] if i else None
                    tl = tails(i, WIN, set(), branches)
                    if isinstance(prev, Ins) and prev.op in ("s_branch", "s_endpgm"): tl = []
                    for p, d in tl:
                        w = need_ws(p, it)
                        if w > d: need = max(need, w - d)
                    if need > 0:
                        ins = []
                        while need > 0:
                            k = min(need, 16); ins.append(Ins(f"s_nop {k-1}")); need -= k
                        items[i:i] = ins
                        i += len(ins)
                        changed = True
                        branches = build()
                i += 1
            if not changed: break
        self.items = items
    def text(self):
        return "\n".join(("    " + it.text) if isinstance(it, Ins) else it for it in self.items) + "\n"

def kernel_header(name):
    return [f".globl {name}", ".p2align 8", f".type {name},@function", f"{name}:"]

def kernel_desc(name, vgpr, sgpr=102, accum=None, extra=()):
    accum = accum if accum is not None else min(256, (vgpr + 3) // 4 * 4)
    return [".p2align 6", f".amdhsa_kernel {name}", f"  .amdhsa_next_free_vgpr {vgpr}", f"  .amdhsa_next_free_sgpr {sgpr}",
            f"  .amdhsa_accum_offset {accum}", "  .amdhsa_group_segment_fixed_size 0", "  .amdhsa_kernarg_size 112",
            "  .amdhsa_user_sgpr_count 2", "  .amdhsa_user_sgpr_kernarg_segment_ptr 1", "  .amdhsa_system_sgpr_workgroup_id_x 1",
            *extra, ".end_amdhsa_kernel"]

def vr(lo, n, k="v"):
    return f"{k}[{lo}:{lo+n-1}]" if n > 1 else f"{k}{lo}"
```

```python
from asmlib import *

class G:
    def __init__(self, **kw): self.__dict__.update(kw)
    def get(self, k, d=None): return self.__dict__.get(k, d)

WS_BYTES = 268435456

def gemm_core(P, c):
    NW, TN, TM, wn, wm, KS, S, NKS = c.NW, c.TN, c.TM, c.wn, c.wm, c.KS, c.S, c.NKS
    NS = NKS // KS
    STAGE = (TN + TM) * KS * 1024
    c.STAGE = STAGE
    ak, ab = c.acc; fk, fb = c.frag
    vA0, vB0, vA, vB, vG = c.vt, c.vt + 1, c.vt + 2, c.vt + 3, c.vt + 4
    KG = c.get("KG", 1); NG = KS // KG
    nfr = wn + wm
    def acc(tn, tm): return vr(ab + (tn * wm + tm) * 16, 16, ak)
    def fA(buf, tn, kk): return vr(fb + ((buf * KG + kk) * nfr + tn) * 4, 4, fk)
    def fB(buf, tm, kk): return vr(fb + ((buf * KG + kk) * nfr + wn + tm) * 4, 4, fk)
    UL = c.get("UL", min(KS, 4))
    upt = KS // UL
    units = (TN + TM) * upt
    upw = (units + NW - 1) // NW
    partial = units % NW != 0
    sUG = 46; sUL = 46 + upw
    sRD, sWR, sCNT, sT0, sT1, sT2 = 40, 41, 42, 43, 44, 39
    assert sUL + upw <= 80
    P(f"v_and_b32 v{vG}, 63, v0")
    P(f"v_lshlrev_b32 v{vG}, 4, v{vG}")
    lbl = [0]
    def unit_setup(j):
        P(f"s_add_u32 s{sT0}, s22, {j*NW}")
        P(f"s_mul_i32 s{sUL+j}, s{sT0}, {UL*1024}")
        if c.lds_base: P(f"s_add_u32 s{sUL+j}, s{sUL+j}, {c.lds_base}")
        if upt > 1:
            P(f"s_and_b32 s{sT2}, s{sT0}, {upt-1}")
            P(f"s_mul_i32 s{sT2}, s{sT2}, {UL*1024}")
            P(f"s_lshr_b32 s{sT0}, s{sT0}, {upt.bit_length()-1}")
        P(f"s_add_u32 s{sT1}, s{sT0}, s20")
        P(f"s_mul_i32 s{sT1}, s{sT1}, {c.A_pitch}")
        P(f"s_add_u32 s{sT1}, s{sT1}, {c.A_base}")
        P(f"s_add_u32 s{sUG+j}, s{sT0}, s21")
        P(f"s_mul_i32 s{sUG+j}, s{sUG+j}, {c.B_pitch}")
        P(f"s_add_u32 s{sUG+j}, s{sUG+j}, {(c.B_base - TN*c.B_pitch) & 0xffffffff}")
        P(f"s_cmp_lt_u32 s{sT0}, {TN}")
        P(f"s_cselect_b32 s{sUG+j}, s{sT1}, s{sUG+j}")
        if upt > 1: P(f"s_add_u32 s{sUG+j}, s{sUG+j}, s{sT2}")
    def dma_group(stage_tag, slot_sreg=None, slot_imm=None):
        groups = []
        for j in range(upw):
            for k in range(UL):
                g = []
                if k == 0:
                    if slot_sreg is not None: g.append(f"s_add_u32 m0, s{slot_sreg}, s{sUL+j}")
                    else: g.append(f"s_add_u32 m0, s{sUL+j}, {slot_imm}")
                ld = f"buffer_load_dwordx4 v{vG}, s[4:7], s{sUG+j} offen offset:{k*1024} lds"
                cond = partial and j == upw - 1
                if cond:
                    lbl[0] += 1
                    L = f"L_{c.name}_skip{lbl[0]}"
                    g += [f"s_cbranch_vccz {L}", ld, f"{L}:"]
                else:
                    g.append(ld)
                groups.append([stage_tag, not cond, g])
        groups[-1][2].append(f"v_add_u32 v{vG}, {KS*1024}, v{vG}")
        return groups
    ng = upw * UL
    n1 = min(ng, c.get("n1", (ng + NG - 1) // NG))
    issued = []
    def note(groups):
        for g in groups: issued.append((g[0], g[1]))
    def allowed(stage):
        last = max(i for i, (t, _) in enumerate(issued) if t is not None and t <= stage)
        return min(63, sum(1 for t, cnt in issued[last + 1:] if cnt))
    R = min(c.get("R", 2), S)
    if partial:
        P(f"s_cmp_lt_u32 s22, {units % NW}")
        P(f"s_cselect_b64 vcc, -1, 0")
    g0 = dma_group(0, slot_imm=0)
    for j in range(upw):
        unit_setup(j)
        for g in g0[j*UL:(j+1)*UL]: P.extend(g[2])
    note(g0)
    if c.get("early_hook"):
        n = c.early_hook(P)
        issued.extend([(None, True)] * n)
    for s in range(1, R):
        g = dma_group(s, slot_imm=s * STAGE)
        for x in g: P.extend(x[2])
        note(g)
    backlog = []
    for s in range(R, S): backlog += dma_group(s, slot_imm=s * STAGE)
    GN, GM = c.GN, c.GM
    P(f"v_and_b32 v{vA}, 63, v0")
    P(f"v_lshlrev_b32 v{vA}, 4, v{vA}")
    P(f"s_and_b32 s{sT0}, s22, {GN-1}")
    P(f"s_mul_i32 s{sT0}, s{sT0}, {wn*KS*1024}")
    if c.lds_base: P(f"s_add_u32 s{sT0}, s{sT0}, {c.lds_base}")
    P(f"v_add_u32 v{vA0}, s{sT0}, v{vA}")
    P(f"s_lshr_b32 s{sT0}, s22, {GN.bit_length()-1}")
    P(f"s_mul_i32 s{sT0}, s{sT0}, {wm*KS*1024}")
    P(f"s_add_u32 s{sT0}, s{sT0}, {TN*KS*1024 + c.lds_base}")
    P(f"v_add_u32 v{vB0}, s{sT0}, v{vA}")
    if c.get("pre_hook"):
        n = c.pre_hook(P, issued)
        issued.extend([(None, True)] * (n or 0))
    for r in range(wn * wm * 16):
        P(f"v_mov_b32 v{ab+r}, 0" if ak == "v" else f"v_accvgpr_write_b32 a{ab+r}, 0")
    P(f"s_mov_b32 s{sRD}, 0")
    P(f"v_mov_b32 v{vA}, v{vA0}")
    P(f"v_mov_b32 v{vB}, v{vB0}")
    P(f"s_waitcnt vmcnt({allowed(0)})")
    P("s_barrier")
    def reads(buf, g):
        out = []
        for kk in range(KG):
            ks = g * KG + kk
            r = [f"ds_read_b128 {fB(buf, tm, kk)}, v{vB} offset:{(tm*KS+ks)*1024}" for tm in range(wm)]
            r2 = [f"ds_read_b128 {fA(buf, tn, kk)}, v{vA} offset:{(tn*KS+ks)*1024}" for tn in range(wn)]
            out += [r2[0]] + r + r2[1:]
        return out
    if c.get("stamp0"): c.stamp0(P)
    P.extend(reads(0, 0))
    def mfmas(buf):
        if c.get("m16"):
            As = [fA(buf, tn, kk) for tn in range(wn) for kk in range(KG)]
            Bs = [fB(buf, tm, kk) for tm in range(wm) for kk in range(KG)]
            o = []
            pairs = [(ia, ib) for ia in range(len(As)) for ib in (range(len(Bs)) if not (c.get("snake") and ia & 1) else reversed(range(len(Bs))))]
            if c.get("binner") == 0: pairs = [(ia, ib) for ib in range(len(Bs)) for ia in range(len(As))]
            for ia, ib in pairs:
                d = vr(ab + (ia * len(Bs) + ib) * 4, 4, ak)
                o.append(f"v_mfma_f32_16x16x32_bf16 {d}, {As[ia]}, {Bs[ib]}, {d}")
            return o
        return [f"v_mfma_f32_32x32x16_bf16 {acc(tn,tm)}, {fA(buf,tn,kk)}, {fB(buf,tm,kk)}, {acc(tn,tm)}" for kk in range(KG) for tn in range(wn) for tm in range(wm)]
    def weave(mf, rd, dm):
        n = len(mf)
        slots = [[] for _ in range(n)]
        for k, g in enumerate(rd):
            if c.get("rd_span"): slots[min(n - 1, int(k * n * c.rd_span) // len(rd))] += [g]
            else: slots[min(n - 1, (k * n) // len(rd) if len(rd) > n else k)] += [g]
        for k, g in enumerate(dm):
            slots[min(n - 1, (k * n) // len(dm) + (n // len(dm)) // 2)] += g[2]
        note(dm)
        out = []
        for i in range(n):
            out.append(mf[i]); out += slots[i]
        if c.get("no_dma"): out = [o for o in out if not o.startswith("buffer_load")]
        if c.get("no_rd"): out = [o for o in out if not o.startswith("ds_read")]
        if c.get("no_mfma"): out = [o for o in out if not o.startswith("v_mfma")]
        return out
    bufstate = [0]
    def stage_body(i, early, late, last):
        for g in range(NG):
            buf = bufstate[0]
            if g < NG - 1:
                P("s_waitcnt lgkmcnt(0)")
                lo = g * len(early) // (NG - 1); hi = (g + 1) * len(early) // (NG - 1)
                P.extend(weave(mfmas(buf), reads(buf ^ 1, g + 1), early[lo:hi]))
            elif last:
                P("s_waitcnt lgkmcnt(0)")
                P.extend(weave(mfmas(buf), [], late))
            else:
                P(f"s_mov_b32 s{sWR}, s{sRD}")
                P(f"s_add_u32 s{sRD}, s{sRD}, {STAGE}")
                P(f"s_cmp_eq_u32 s{sRD}, {S*STAGE}")
                P(f"s_cselect_b32 s{sRD}, 0, s{sRD}")
                P(f"s_waitcnt vmcnt({allowed(i+1)}) lgkmcnt(0)")
                P(f"v_add_u32 v{vA}, s{sRD}, v{vA0}")
                P(f"v_add_u32 v{vB}, s{sRD}, v{vB0}")
                if not c.get("no_bar"): P("s_barrier")
                P.extend(weave(mfmas(buf), reads(buf ^ 1, 0), late))
            bufstate[0] ^= 1
    E = c.get("E", S - R if S > R else 0)
    queue = list(backlog)
    unroll = 1 if NG % 2 == 0 else 2
    nmain_total = NS - S
    E = min(E, nmain_total)
    while (nmain_total - E) % unroll: E += 1
    total = len(backlog) + E * ng - ((ng - n1) if E else 0)
    slots_n = E * NG
    done = 0
    for i in range(E):
        early = []
        for g in range(NG - 1):
            tgt = total * (i * NG + g + 1) // slots_n
            k = min(len(queue), tgt - done); early += queue[:k]; queue = queue[k:]; done += k
        while queue and queue[0][0] <= i + 1:
            early.append(queue.pop(0)); done += 1
        if NG == 1 and early:
            for g in early: P.extend(g[2])
            note(early); early = []
        queue += dma_group(i + S, slot_imm=(i % S) * STAGE)
        tgt = total * (i * NG + NG) // slots_n
        k = min(len(queue), tgt - done); late = queue[:k]; queue = queue[k:]; done += k
        stage_body(i, early, late, False)
    if E == 0:
        for g in queue: P.extend(g[2])
        note(queue); queue = []
        pend0 = 0
    else:
        assert len(queue) == ng - n1, (len(queue), ng, n1)
    nloop = nmain_total - E
    i = E
    if nloop > 0:
        assert E > 0 or n1 == ng
        P(f"s_mov_b32 s{sCNT}, {nloop // unroll}")
        c.nloop = nloop
        if c.get("loop_stamp"): c.loop_stamp(P, 0)
        P(".p2align 6")
        P(f"L_{c.name}_loop:")
        for u in range(unroll):
            stage_body(i + u, dma_group(i + u - 1 + S, slot_sreg=sWR)[n1:], dma_group(i + u + S, slot_sreg=sWR)[:n1], False)
        P(f"s_sub_u32 s{sCNT}, s{sCNT}, 1")
        P(f"s_cmp_lg_u32 s{sCNT}, 0")
        P(f"s_cbranch_scc1 L_{c.name}_loop")
        if c.get("loop_stamp"): c.loop_stamp(P, 1)
        hist = []
        for j in range(max(0, nmain_total - S), nmain_total):
            gs = dma_group(j + S, slot_imm=0)
            hist += [(g[0], g[1]) for g in gs]
        issued[:] = hist[:len(hist) - (ng - n1)]
    tail_extra = list(c.get("tail_extra") or [])
    for t in range(S):
        i = nmain_total + t
        early = dma_group(NS - 1, slot_sreg=sWR)[n1:] if (t == 0 and nmain_total > 0) else []
        tn_ = max(1, c.get("tail_n", 1) - t)
        k = (len(tail_extra) + tn_ - 1) // tn_
        late = tail_extra[:k]; tail_extra = tail_extra[k:]
        stage_body(i, early, late, t == S - 1)
```

```python
import sys
from asmlib import *
from layout import *
from gemm import G, gemm_core

KA = dict(x=0, wq=8, wk=16, wv=24, wo=32, bx=40, wg=48, wu=56, wd=64, c=72, wmod=80, out=88, dbg=96, ws=104)
SZ = dict(x=2048*1024*2, wq=1024*1024*2, wk=65536, wv=65536, wo=1024*1024*2, wg=1024*3584*2, wu=1024*3584*2, wd=3584*1024*2,
          c=2048, wmod=1024*6144*2, out=2048*1024*2, ws=WS_BYTES)
LOG2E = 0x3fb8aa3b

def begin(P, name, nblocks, srds):
    P.extend(kernel_header(name))
    P(f"s_cmp_ge_u32 s2, {nblocks}")
    P(f"s_cbranch_scc1 L_{name}_exit")
    if TS:
        P("s_memrealtime s[92:93]"); P("s_memtime s[90:91]")
        for i in range(4): P(f"s_mov_b32 s{80+2*i}, 0")
    for b, s in srds:
        P(f"s_load_dwordx2 s[{s}:{s+1}], s[0:1], {KA[b]}")
    P("v_lshrrev_b32 v1, 6, v0")
    P("v_readfirstlane_b32 s22, v1")
    P("s_waitcnt lgkmcnt(0)")
    for b, s in srds:
        P(f"s_and_b32 s{s+1}, s{s+1}, 0xffff")
        P(f"s_mov_b32 s{s+2}, {SZ[b]}")
        P(f"s_mov_b32 s{s+3}, 0x00020000")

import os
TS = int(os.environ.get("TS", "0"))
OFF_TS = 0x8000000
TSIDX = {}
def stamp(P, i):
    if TS:
        P(f"s_memrealtime s[{80+2*i}:{81+2*i}]")
        P("s_waitcnt lgkmcnt(0)")
def end(P, name, novm=False):
    P(f"L_{name}_end:")
    if TS:
        k = TSIDX.setdefault(name, len(TSIDX))
        P("s_mov_b64 exec, -1")
        P("s_waitcnt lgkmcnt(0)" if novm else "s_waitcnt vmcnt(0) lgkmcnt(0)")
        P("s_memrealtime s[94:95]")
        P("s_memtime s[88:89]")
        P("s_lshl_b32 s96, s2, 9")
        P("s_lshl_b32 s97, s22, 5")
        P("s_add_u32 s96, s96, s97")
        P(f"s_add_u32 s96, s96, {OFF_TS + k*0x80000}")
        P("s_waitcnt lgkmcnt(0)")
        P("s_sub_u32 s88, s88, s90")
        P("v_mov_b32 v2, s92")
        P("v_mov_b32 v3, s94")
        P("v_mov_b32 v4, s88")
        P("v_mov_b32 v5, s80")
        P("v_mov_b32 v6, s82")
        P("v_mov_b32 v7, s84")
        P("v_mov_b32 v8, s86")
        P("v_mov_b32 v9, 0")
        P("v_mov_b32 v10, 0")
        P("buffer_store_dwordx4 v[2:5], v10, s[4:7], s96 offen")
        P("buffer_store_dwordx4 v[6:9], v10, s[4:7], s96 offen offset:16")
    P(f"L_{name}_exit:")
    P("s_endpgm")

def prep_lane_consts(P, vl, vsrc_row, vsrc_chunk, vtr, vt, plain=True):
    P(f"v_lshrrev_b32 v{vsrc_row}, 4, v{vl}")
    P(f"v_lshlrev_b32 v{vt}, 2, v{vsrc_row}")
    P(f"v_and_b32 v{vsrc_chunk}, 15, v{vl}")
    P(f"v_xor_b32 v{vsrc_chunk}, v{vt}, v{vsrc_chunk}")
    P(f"v_lshlrev_b32 v{vsrc_chunk}, 4, v{vsrc_chunk}")
    P(f"v_bfe_u32 v{vtr}, v{vl}, 1, 1")
    P(f"v_lshlrev_b32 v{vtr}, 3, v{vtr}")
    P(f"v_and_b32 v{vt}, 1, v{vl}")
    P(f"v_lshl_or_b32 v{vtr}, v{vt}, 4, v{vtr}")
    P(f"v_bfe_u32 v{vt}, v{vl}, 4, 1")
    P(f"v_lshl_or_b32 v{vtr}, v{vt}, {5 if plain else 12}, v{vtr}")
    P(f"v_bfe_u32 v{vt}, v{vl}, 2, 2")
    P(f"v_lshl_or_b32 v{vtr}, v{vt}, 6, v{vtr}")
    P(f"v_lshl_or_b32 v{vtr}, v{vt}, 8, v{vtr}")
    P(f"v_bfe_u32 v{vt}, v{vl}, 5, 1")
    P(f"v_lshl_or_b32 v{vtr}, v{vt}, 11, v{vtr}")

def prep_dma(P, srd, vsrc, s_src, pitch, s_lds, st):
    for q in range(4):
        P(f"s_add_u32 m0, s{s_lds}, {q*1024}")
        P(f"s_add_u32 s{st}, s{s_src}, {q*4*pitch}")
        P(f"buffer_load_dwordx4 v{vsrc}, s[{srd}:{srd+3}], s{st} offen lds")

def prep_plain_out(P, vtr_abs, vtmp, vdata, vl16, s_dst, ntpitch, st, nnt=4):
    for nt in range(nnt):
        P(f"v_xor_b32 v{vtmp+nt}, {nt<<6}, v{vtr_abs}")
    for nt in range(nnt):
        P(f"ds_read_b64_tr_b16 v[{vdata+4*nt}:{vdata+4*nt+1}], v{vtmp+nt}")
        P(f"ds_read_b64_tr_b16 v[{vdata+4*nt+2}:{vdata+4*nt+3}], v{vtmp+nt} offset:1024")
    for nt in range(nnt):
        P(f"s_add_u32 s{st}, s{s_dst}, {nt*ntpitch}")
        P(f"s_waitcnt lgkmcnt({2*(nnt-1-nt)})")
        P(f"buffer_store_dwordx4 v[{vdata+4*nt}:{vdata+4*nt+3}], v{vl16}, s[4:7], s{st} offen")

def round_bf16(P, v, tmp=None):
    P(f"v_cvt_pk_bf16_f32 v{v}, v{v}, v{v}")
    P(f"v_lshlrev_b32 v{v}, 16, v{v}")

def k1():
    name = "k1_kernel"
    P = Prog()
    NB = 384 + 8
    begin(P, name, NB, [("ws", 4), ("wmod", 8), ("c", 12), ("wk", 24), ("wv", 28)])
    P("s_cmp_ge_u32 s2, 384")
    P(f"s_cbranch_scc1 L_k1_prep")
    P("s_and_b32 s32, s2, 3")
    P("s_lshr_b32 s33, s2, 2")
    P("v_lshrrev_b32 v2, 3, v0")
    P("v_and_b32 v3, 7, v0")
    P("s_lshl_b32 s34, s32, 8")
    P("v_add_u32 v4, s34, v2")
    P("v_lshlrev_b32 v5, 1, v4")
    P("s_mov_b32 s35, 12288")
    P("v_mul_lo_u32 v4, v4, s35")
    P("v_lshl_add_u32 v4, v3, 4, v4")
    P("s_lshl_b32 s36, s33, 7")
    P("v_add_u32 v4, s36, v4")
    for it in range(8):
        P(f"buffer_load_ushort v{8+it}, v5, s[12:15], 0 offen offset:{it*64}")
    for it in range(8):
        P(f"s_mov_b32 s37, {it*32*12288}")
        P(f"buffer_load_dwordx4 v[{16+4*it}:{19+4*it}], v4, s[8:11], s37 offen")
    for j in range(8): P(f"v_mov_b32 v{48+j}, 0")
    P("s_waitcnt vmcnt(8)")
    for it in range(8):
        P(f"v_lshlrev_b32 v{8+it}, 16, v{8+it}")
        P(f"v_mul_f32 v56, {LOG2E:#x}, v{8+it}")
        P(f"v_exp_f32 v56, -v56")
        P(f"v_add_f32 v56, 1.0, v56")
        P(f"v_rcp_f32 v56, v56")
        P(f"v_mul_f32 v{8+it}, v{8+it}, v56")
        round_bf16(P, 8 + it)
    for it in range(8):
        P(f"s_waitcnt vmcnt({7-it})")
        for d in range(4):
            P(f"v_lshlrev_b32 v56, 16, v{16+4*it+d}")
            P(f"v_and_b32 v57, 0xffff0000, v{16+4*it+d}")
            P(f"v_fmac_f32 v{48+2*d}, v56, v{8+it}")
            P(f"v_fmac_f32 v{49+2*d}, v57, v{8+it}")
    P("v_lshlrev_b32 v6, 5, v0")
    P("ds_write_b128 v6, v[48:51]")
    P("ds_write_b128 v6, v[52:55] offset:16")
    P("s_waitcnt lgkmcnt(0)")
    P("s_barrier")
    P("s_cmp_lg_u32 s22, 0")
    P(f"s_cbranch_scc1 L_{name}_end")
    P("v_lshlrev_b32 v6, 2, v0")
    for j in range(32):
        P(f"ds_read_b32 v{8+j}, v6 offset:{j*256}")
        if j == 14 or j == 29: P("s_waitcnt lgkmcnt(0)")
    P("s_waitcnt lgkmcnt(0)")
    for st in (16, 8, 4, 2, 1):
        for j in range(st): P(f"v_add_f32 v{8+j}, v{8+j}, v{8+j+st}")
    P("s_mul_i32 s34, s32, 24576")
    P("s_lshl_b32 s36, s33, 8")
    P("s_add_u32 s34, s34, s36")
    P(f"s_add_u32 s34, s34, {OFF_MODP}")
    P("buffer_store_dword v8, v6, s[4:7], s34 offen")
    P(f"s_branch L_{name}_end")
    P("L_k1_prep:")
    P("v_and_b32 v2, 63, v0")
    P("v_lshlrev_b32 v7, 4, v2")
    P("s_lshl_b32 s40, s22, 13")
    P("L_k1_kv:")
    P("s_sub_u32 s32, s2, 384")
    P("s_lshl_b32 s32, s32, 2")
    P("s_add_u32 s32, s32, s22")
    P("s_lshl_b32 s33, s32, 11")
    for mat, srd in ((0, 24), (1, 28)):
        for q in range(2):
            P(f"s_add_u32 m0, s40, {mat*2048 + q*1024}")
            P(f"buffer_load_dwordx4 v7, s[{srd}:{srd+3}], s33 offen offset:{q*1024} lds".replace(f"offset:{q*1024} ", "") if False else
              f"s_add_u32 s36, s33, {q*1024}")
            P(f"buffer_load_dwordx4 v7, s[{srd}:{srd+3}], s36 offen lds")
    P("v_lshrrev_b32 v8, 4, v2")
    P("v_lshlrev_b32 v8, 3, v8")
    P("v_bfe_u32 v9, v2, 2, 2")
    P("v_add_u32 v8, v8, v9")
    P("v_lshlrev_b32 v8, 6, v8")
    P("v_add_u32 v8, s40, v8")
    P("v_and_b32 v9, 3, v2")
    P("v_lshl_add_u32 v10, v9, 4, v8")
    P("v_and_b32 v11, 1, v2")
    P("v_lshl_add_u32 v11, v11, 4, v8")
    P("v_bfe_u32 v9, v2, 1, 1")
    P("v_lshl_add_u32 v11, v9, 3, v11")
    P("s_waitcnt vmcnt(0)")
    for T in range(2):
        for hf in range(2):
            P(f"ds_read_b64_tr_b16 v[{16+4*T+2*hf}:{17+4*T+2*hf}], v10 offset:{T*8 + hf*256}")
    for T in range(2):
        for hf in range(2):
            P(f"ds_read_b64_tr_b16 v[{24+4*T+2*hf}:{25+4*T+2*hf}], v11 offset:{2048 + T*32 + hf*256}")
    P("s_lshl_b32 s35, s32, 10")
    P("s_waitcnt lgkmcnt(0)")
    for j in range(4):
        P(f"s_add_u32 s36, s35, {OFF_FWKV + j*32768}")
        P(f"buffer_store_dwordx4 v[{16+4*j}:{19+4*j}], v7, s[4:7], s36 offen")
    end(P, name)
    P.resolve()
    return dict(name=name, text=P.text(), vgpr=64, sgpr=48, grid=NB, block=256, lds=32768)

KERNELS = []
def main(path):
    ks = [f() for f in KERNELS]
    hdr = open("adaLN_cond__grouped_kv_mqa__geglu_ffn__prompt.s.ref").read().split("\n")
    lines = [l for l in hdr if l.startswith(";") and "@launch" not in l and "Override" not in l and "grid=ceil" not in l]
    lines = lines[:15]
    for k in ks:
        lines.append(f"; @launch kernel={k['name']} grid=({k['grid']},1,1) block=({k['block']},1,1) lds={k['lds']}")
    lines += ['.amdgcn_target "amdgcn-amd-amdhsa--gfx950"', ".text"]
    import re
    SF = os.environ.get("STORE_FLAG", "sc1")
    for k in ks:
        t = k["text"]
        if SF and k["name"] != "k6_kernel": t = re.sub(r"(buffer_store_dwordx4 [^\n]*)", lambda m: m.group(1) + " " + SF, t)
        lines.append(t)
    lines.append('.section .rodata,"a"')
    for k in ks: lines += kernel_desc(k["name"], k["vgpr"], 100 if TS else k["sgpr"], k.get("accum"))
    open(path, "w").write("\n".join(lines) + "\n")
```
